```python
import torch

def _softmax(x, axis=-1):
    return torch.softmax(x, dim=axis)
def _gelu(x):
    return torch.nn.functional.gelu(x, approximate="tanh")
def _silu(x):
    return torch.nn.functional.silu(x)
def _sigmoid(x):
    return torch.sigmoid(x)
def _layernorm(x, axis=-1, eps=1e-5):
    m = x.mean(dim=axis, keepdim=True)
    v = x.var(dim=axis, keepdim=True, unbiased=False)
    return (x - m) / torch.sqrt(v + eps)
def _scatter_add(tgt, idx, src, axis=0):
    return tgt.clone().index_add_(axis, idx, src)
def _segment_sum(src, seg, n):
    out = torch.zeros((n,) + src.shape[1:], dtype=src.dtype)
    return out.index_add_(0, seg, src)
def _pad(x, pw):
    flat = tuple(v for pair in reversed(pw) for v in pair)
    return torch.nn.functional.pad(x, flat)

kernel_name = 'concat_heads__grouped_kv_mqa__softmax_full_mha__prompt'

def setup_inputs():

    _w = (lambda a: (lambda t: t.to(torch.bfloat16) if t.is_floating_point() else t)(torch.as_tensor(a)))
    def _A_setup():
        B, S, D, H = 1, 2048, 1024, 32
        Dh = D // H
        return {
            "x": _w((lambda *s: torch.randn(*s, dtype=torch.bfloat16) * 0.05)(B, S, D)),
            "wq": _w((lambda *s: torch.randn(*s, dtype=torch.bfloat16) * 0.8)(D, H * Dh)),
            "wk": _w((lambda *s: torch.randn(*s, dtype=torch.bfloat16) * 0.8)(D, Dh)),
            "wv": _w((lambda *s: torch.randn(*s, dtype=torch.bfloat16) * 0.1)(D, Dh)),
            "wo": _w((lambda *s: torch.randn(*s, dtype=torch.bfloat16) * 0.1)(H * Dh, D)),
        }
    _A_in = _A_setup()

    def _B_setup():
        B, S, D = 1, 2048, 1024
        return {
            "x": _w((lambda *s: torch.randn(*s, dtype=torch.bfloat16) * 0.2)(B, S, D)),
            "wqkv": _w((lambda *s: torch.randn(*s, dtype=torch.bfloat16) * 0.2)(D, 3 * D)),
            "wo": _w((lambda *s: torch.randn(*s, dtype=torch.bfloat16) * 0.05)(D, D)),
        }
    _B_in = _B_setup()

    return {
        "A_x": _A_in["x"],
        "A_wq": _A_in["wq"],
        "A_wk": _A_in["wk"],
        "A_wv": _A_in["wv"],
        "A_wo": _A_in["wo"],
        "B_x": _B_in["x"],
        "B_wqkv": _B_in["wqkv"],
        "B_wo": _B_in["wo"],
    }

def reference(A_x, A_wq, A_wk, A_wv, A_wo, B_x, B_wqkv, B_wo):
    def _A_ref(x, wq, wk, wv, wo):
        B, S, D = x.shape
        H = 32
        Dh = D // H
        q = (lambda x, *d: x.permute(*d))((x @ wq).reshape(B, S, H, Dh), 0, 2, 1, 3)
        k = x @ wk
        v = x @ wv
        scores = torch.einsum("bhqd,bkd->bhqk", q, k) * (Dh ** -0.5)
        p = _softmax(scores, axis=-1)
        o = torch.einsum("bhqk,bkd->bhqd", p, v)
        return (lambda x, *d: x.permute(*d))(o, 0, 2, 1, 3).reshape(B, S, H * Dh) @ wo

    def _B_ref(x, wqkv, wo):
        B, S, D = x.shape
        H = 32; Dh = D // H
        qkv = (lambda x, *d: x.permute(*d))((x @ wqkv).reshape(B, S, 3, H, Dh), 2, 0, 3, 1, 4)
        q, k, v = qkv[0], qkv[1], qkv[2]
        scale = Dh ** -0.5
        scores = torch.einsum("bhqd,bhkd->bhqk", q, k) * scale
        p = _softmax(scores, axis=-1)
        o = torch.einsum("bhqk,bhkd->bhqd", p, v)
        return (lambda x, *d: x.permute(*d))(o, 0, 2, 1, 3).reshape(B, S, D) @ wo

    a = _A_ref(A_x, A_wq, A_wk, A_wv, A_wo)
    b = _B_ref(B_x, B_wqkv, B_wo)
    return torch.concatenate([a, b], axis=-1)
```

```python
class Asm:
    def __init__(self):
        self.lines = []
        self.n = 0
    def __call__(self, s):
        for l in s.split("\n"):
            l = l.strip()
            if l: self.lines.append(("" if l.endswith(":") or l.startswith(".") else "    ") + l)
    def label(self, base):
        self.n += 1
        return f"{base}_{self.n}"
    def text(self):
        return "\n".join(self.lines) + "\n"

def vr(a, n): return f"v[{a}:{a+n-1}]"
def sr(a, n): return f"s[{a}:{a+n-1}]"

def kernel_head(A, name):
    A(f""".text
.globl {name}
.p2align 8
.type {name},@function
{name}:""")

def kernel_desc(name, vgpr, sgpr=96, accum=None):
    accum = accum if accum is not None else (vgpr + 3) // 4 * 4
    return f""".section .rodata,"a"
.p2align 6
.amdhsa_kernel {name}
  .amdhsa_next_free_vgpr {vgpr}
  .amdhsa_next_free_sgpr {sgpr}
  .amdhsa_accum_offset {accum}
  .amdhsa_group_segment_fixed_size 0
  .amdhsa_kernarg_size 88
  .amdhsa_user_sgpr_count 2
  .amdhsa_user_sgpr_kernarg_segment_ptr 1
  .amdhsa_system_sgpr_workgroup_id_x 1
  .amdhsa_float_denorm_mode_32 3
.end_amdhsa_kernel
"""

def srd(A, d, lo, hi, size):
    A(f"s_mov_b32 s{d}, {lo}")
    A(f"s_and_b32 s{d+1}, {hi}, 0xffff")
    A(f"s_mov_b32 s{d+2}, {size}")
    A(f"s_mov_b32 s{d+3}, 0x20000")

def interleave(main, fill, pattern):
    out = []; k = 0
    for i, m in enumerate(main):
        out.append(m)
        n = pattern[i] if i < len(pattern) else 0
        out += fill[k:k+n]; k += n
    out += fill[k:]
    return out

WS_Q   = 0
WS_KV  = 8 << 20
WS_O   = 20 << 20
WS_SIZE = 28 << 20
```

```python
from asm import *
import math

def gen_k1(NS=5, name="qkv_kernel"):
    A = Asm()
    STG = 28672
    NST = 32
    kernel_head(A, name)
    A(f"""
    s_cmp_ge_u32 s2, 256
    s_cbranch_scc1 K1_END
    s_load_dwordx16 s[16:31], s[0:1], 0
    s_load_dwordx2 s[32:33], s[0:1], 80
    v_lshrrev_b32 v1, 6, v0
    v_and_b32 v0, 63, v0
    s_and_b32 s3, s2, 7
    v_readfirstlane_b32 s8, v1
    s_lshr_b32 s4, s2, 3
    s_lshr_b32 s5, s3, 1
    s_lshl_b32 s5, s5, 2
    s_and_b32 s6, s4, 3
    s_add_u32 s5, s5, s6
    s_and_b32 s6, s3, 1
    s_lshl_b32 s6, s6, 3
    s_lshr_b32 s7, s4, 2
    s_add_u32 s6, s6, s7
    s_waitcnt lgkmcnt(0)
    s_cmp_lt_u32 s5, 4
    s_cselect_b32 s36, s16, s26
    s_cselect_b32 s37, s17, s27
    s_cselect_b32 s40, s18, s28
    s_cselect_b32 s41, s19, s29
    s_mov_b32 s42, 0x600000
    s_mov_b32 s52, 6144
    s_cselect_b32 s42, 0x200000, s42
    s_cselect_b32 s52, 2048, s52
    s_cselect_b32 s53, 0, 4
    s_and_b32 s37, s37, 0xffff
    s_and_b32 s41, s41, 0xffff
    s_mov_b32 s38, 0x400000
    s_mov_b32 s39, 0x20000
    s_mov_b32 s43, 0x20000
    s_sub_u32 s53, s5, s53
    s_lshl_b32 s54, s53, 9
    """)
    srd(A, 48, "s32", "s33", WS_SIZE)
    A("""
    s_cmp_ge_u32 s8, 4
    s_cbranch_scc1 K1_LOADER
    """)
    ACC = 128
    F = [dict(x=64, w=80), dict(x=96, w=112)]
    nsets = (NS + 1) // 2
    A(f"""
    v_and_b32 v2, 31, v0
    v_lshrrev_b32 v3, 5, v0
    v_lshrrev_b32 v4, 2, v2
    v_and_b32 v4, 3, v4
    v_xor_b32 v4, v4, v3
    v_lshlrev_b32 v5, 6, v2
    v_lshl_add_u32 v8, v4, 4, v5
    v_xor_b32 v9, 32, v8
    v_lshrrev_b32 v2, 2, v0
    v_and_b32 v2, 3, v2
    s_lshl_b32 s9, s8, 1
    v_xor_b32 v4, s9, v2
    v_lshlrev_b32 v4, 6, v4
    v_lshl_add_u32 v5, v3, 3, v2
    v_lshl_add_u32 v4, v5, 9, v4
    v_lshrrev_b32 v5, 4, v0
    v_and_b32 v5, 1, v5
    v_lshl_add_u32 v4, v5, 5, v4
    v_and_b32 v5, 3, v0
    v_lshl_add_u32 v4, v5, 3, v4
    v_add_u32 v10, 8192, v4
    v_xor_b32 v11, 64, v10
    """)
    for k in range(1, nsets):
        for j in range(4):
            A(f"v_add_u32 v{8+4*k+j}, {2*STG*k}, v{8+j}")
    for i in range(128): A(f"v_mov_b32 v{ACC+i}, 0")
    for i in range(24): A(f"v_mov_b32 v{96+i}, 0")

    def reads(slot, ks, f):
        k = slot // 2; off = (slot % 2) * STG
        b = 8 + 4 * k
        r = []
        fx, fw = F[f]['x'], F[f]['w']
        def xr(tt): return f"ds_read_b128 {vr(fx+4*tt,4)}, v{b+ks} offset:{off+tt*2048}"
        def wr(c, j): return f"ds_read_b64_tr_b16 {vr(fw+4*c+2*j,2)}, v{b+2+c} offset:{off+(16*ks+4*j)*512}"
        return [wr(0,0), wr(0,1), xr(0), xr(1), wr(1,0), wr(1,1), xr(2), xr(3)]
    def mfmas(f, vtype):
        fx, fw = F[f]['x'], F[f]['w']
        out = []
        for c in range(2):
            for tt in range(4):
                a = ACC + 16 * (tt * 2 + c)
                x = vr(fx+4*tt, 4); w = vr(fw+4*c, 4)
                if vtype: out.append(f"v_mfma_f32_32x32x16_bf16 {vr(a,16)}, {x}, {w}, {vr(a,16)}")
                else:     out.append(f"v_mfma_f32_32x32x16_bf16 {vr(a,16)}, {w}, {x}, {vr(a,16)}")
        return out
    def stage(slot, vtype):
        A("s_barrier")
        for l in interleave(mfmas(1, vtype), reads(slot, 0, 0), [2,2,2,2]): A(l)
        A("s_waitcnt lgkmcnt(0)")
        for l in interleave(mfmas(0, vtype), reads(slot, 1, 1), [2,2,2,2]): A(l)
        A("s_waitcnt lgkmcnt(0)")
    A("""
    s_cmp_ge_u32 s5, 12
    s_cbranch_scc1 K1_CV
    """)
    for vtype in (0, 1):
        if vtype: A("K1_CV:")
        q, r = divmod(NST, NS)
        A(f"s_mov_b32 s10, {q}")
        A(".p2align 6")
        A(f"K1_CL{vtype}:")
        for s in range(NS): stage(s, vtype)
        A(f"""
        s_sub_u32 s10, s10, 1
        s_cmp_lg_u32 s10, 0
        s_cbranch_scc1 K1_CL{vtype}
        """)
        for s in range(r): stage(s, vtype)
        for l in mfmas(1, vtype): A(l)
        if not vtype: A("s_branch K1_EPI")
    A("K1_EPI:")
    cscale = math.log2(math.e) / math.sqrt(32.0)
    import struct
    cbits = struct.unpack("<I", struct.pack("<f", cscale))[0]
    A(f"""
    s_and_b32 s11, s53, 3
    s_lshl_b32 s11, s11, 3
    s_lshl_b32 s12, s8, 1
    s_add_u32 s11, s11, s12
    s_cmp_lt_u32 s5, 4
    s_cselect_b32 s12, 0, 32
    s_add_u32 s12, s12, s11
    s_lshl_b32 s12, s12, 17
    s_lshl_b32 s13, s6, 13
    s_add_u32 s12, s12, s13
    s_lshl_b32 s14, s11, 18
    s_lshl_b32 s13, s6, 14
    s_add_u32 s14, s14, s13
    s_add_u32 s14, s14, {WS_KV}
    s_cmp_ge_u32 s5, 12
    s_cselect_b32 s13, 2048, 0
    s_add_u32 s14, s14, s13
    s_cmp_lt_u32 s5, 8
    s_cselect_b32 s12, s12, s14
    s_mov_b32 s56, 4096
    s_mov_b32 s57, 0x40000
    s_cselect_b32 s56, 2048, s56
    s_cselect_b32 s57, 0x20000, s57
    s_cselect_b32 s58, {cbits:#x}, 1.0
    s_mov_b32 s59, s58
    v_lshlrev_b32 v2, 4, v0
    s_nop 7
    """)
    for c in range(2):
        for tt in range(4):
            a = ACC + 16 * (tt * 2 + c)
            if tt == 0:
                if c == 0: A("s_mov_b32 s13, s12")
                else: A("s_add_u32 s13, s12, s57")
            else:
                A("s_add_u32 s13, s13, s56")
            for i in range(8): A(f"v_pk_mul_f32 {vr(a+2*i,2)}, {vr(a+2*i,2)}, s[58:59]")
            for i in range(8): A(f"v_cvt_pk_bf16_f32 v{a+i}, v{a+2*i}, v{a+2*i+1}")
            A(f"buffer_store_dwordx4 {vr(a,4)}, v2, s[48:51], s13 offen")
            A(f"buffer_store_dwordx4 {vr(a+4,4)}, v2, s[48:51], s13 offen offset:1024")
    A("s_endpgm")

    A("K1_LOADER:")
    A(f"""
    s_sub_u32 s9, s8, 4
    s_cmp_lt_u32 s9, 2
    s_cselect_b32 s44, s20, s22
    s_cselect_b32 s45, s21, s23
    s_and_b32 s45, s45, 0xffff
    s_mov_b32 s46, 0x10000
    s_mov_b32 s47, 0x20000
    v_lshrrev_b32 v2, 2, v0
    v_lshrrev_b32 v3, 4, v0
    v_and_b32 v4, 3, v0
    v_xor_b32 v5, v3, v4
    v_lshlrev_b32 v5, 4, v5
    v_lshl_add_u32 v10, v2, 11, v5
    v_lshrrev_b32 v5, 5, v0
    v_and_b32 v6, 7, v2
    v_xor_b32 v6, v6, v5
    v_lshlrev_b32 v6, 6, v6
    v_lshl_add_u32 v6, v4, 4, v6
    v_mul_u32_u24 v7, s52, v5
    v_add_u32 v11, v6, v7
    v_xor_b32 v6, 128, v6
    v_add_u32 v12, v6, v7
    v_lshlrev_b32 v13, 4, v0
    s_lshl_b32 s60, s6, 18
    s_lshl_b32 s61, s9, 16
    s_add_u32 s60, s60, s61
    s_lshl_b32 s61, s9, 3
    s_mul_i32 s61, s61, s52
    s_add_u32 s61, s61, s54
    s_and_b32 s62, s9, 1
    s_lshl_b32 s62, s62, 10
    s_lshl_b32 s63, s52, 1
    s_lshl_b32 s64, s52, 5
    s_lshl_b32 s65, s9, 11
    s_lshl_b32 s66, s9, 12
    s_add_u32 s66, s66, 8192
    s_lshl_b32 s67, s9, 10
    s_add_u32 s67, s67, 24576
    s_mov_b32 s68, 0
    s_mov_b32 s69, 0
    """)
    def issue(withkv):
        A(f"""
        s_add_u32 m0, s65, s68
        s_add_u32 s70, s60, 32768
        buffer_load_dwordx4 v10, s[36:39], s60 offen lds
        s_add_u32 m0, m0, 1024
        s_add_u32 s60, s60, 64
        buffer_load_dwordx4 v10, s[36:39], s70 offen lds
        s_add_u32 m0, s66, s68
        s_add_u32 s70, s61, s63
        buffer_load_dwordx4 v11, s[40:43], s61 offen lds
        s_add_u32 m0, m0, 1024
        s_add_u32 s71, s70, s63
        buffer_load_dwordx4 v12, s[40:43], s70 offen lds
        s_add_u32 m0, m0, 1024
        s_add_u32 s70, s71, s63
        buffer_load_dwordx4 v11, s[40:43], s71 offen lds
        s_add_u32 m0, m0, 1024
        s_add_u32 s61, s61, s64
        buffer_load_dwordx4 v12, s[40:43], s70 offen lds
        """)
        if withkv:
            A(f"""
            s_add_u32 m0, s67, s68
            s_nop 0
            buffer_load_dwordx4 v13, s[44:47], s62 offen lds
            s_add_u32 s62, s62, 2048
            """)
        A(f"""
        s_add_u32 s68, s68, {STG}
        s_cmp_eq_u32 s68, {STG*NS}
        s_cselect_b32 s68, 0, s68
        """)
    def extra():
        l1 = A.label("K1_XV"); l2 = A.label("K1_XD")
        A(f"""
        v_add_u32 v20, s69, v14
        v_add_u32 v21, s69, v15
        ds_read_b128 v[24:27], v20
        ds_read_b64_tr_b16 v[28:29], v21
        ds_read_b64_tr_b16 v[30:31], v21 offset:256
        ds_read_b64_tr_b16 v[32:33], v21 offset:32
        ds_read_b64_tr_b16 v[34:35], v21 offset:288
        s_add_u32 s69, s69, {STG}
        s_cmp_eq_u32 s69, {STG*NS}
        s_cselect_b32 s69, 0, s69
        s_cmp_ge_u32 s9, 2
        s_waitcnt lgkmcnt(0)
        s_cbranch_scc1 {l1}
        v_mfma_f32_16x16x32_bf16 v[40:43], v[28:31], v[24:27], v[40:43]
        v_mfma_f32_16x16x32_bf16 v[44:47], v[32:35], v[24:27], v[44:47]
        s_branch {l2}
        {l1}:
        v_mfma_f32_16x16x32_bf16 v[40:43], v[24:27], v[28:31], v[40:43]
        v_mfma_f32_16x16x32_bf16 v[44:47], v[24:27], v[32:35], v[44:47]
        {l2}:
        """)
    A("""
    s_cmp_ge_u32 s5, 4
    s_cbranch_scc1 K1_LB
    """)
    for isA in (1, 0):
        n = 7 if isA else 6
        if not isA: A("K1_LB:")
        for s in range(NS): issue(isA)
        if isA:
            A(f"""
            s_lshl_b32 s72, s5, 5
            s_and_b32 s73, s9, 1
            s_lshl_b32 s73, s73, 4
            s_add_u32 s72, s72, s73
            v_and_b32 v16, 15, v0
            v_add_u32 v17, s72, v16
            v_lshrrev_b32 v18, 2, v16
            v_xor_b32 v18, v18, v3
            v_lshlrev_b32 v18, 4, v18
            v_lshl_add_u32 v14, v17, 6, v18
            v_lshrrev_b32 v18, 2, v16
            v_lshl_add_u32 v18, v3, 3, v18
            v_lshlrev_b32 v18, 6, v18
            v_lshl_add_u32 v18, v4, 3, v18
            s_lshr_b32 s73, s9, 1
            s_lshl_b32 s73, s73, 11
            s_add_u32 s73, s73, 24576
            v_add_u32 v15, s73, v18
            """)
            for i in range(8): A(f"v_mov_b32 v{40+i}, 0")
        A(f"s_waitcnt vmcnt({(NS-1)*n})")
        A("s_barrier")
        A(f"s_mov_b32 s10, {NST-NS}")
        A(f"K1_LL{isA}:")
        if isA: extra()
        A(f"s_waitcnt vmcnt({(NS-2)*n})")
        A("s_barrier")
        issue(isA)
        A(f"""
        s_sub_u32 s10, s10, 1
        s_cmp_lg_u32 s10, 0
        s_cbranch_scc1 K1_LL{isA}
        """)
        for s in range(NST-NS, NST-1):
            if isA: extra()
            A(f"s_waitcnt vmcnt({(30-s)*n})")
            A("s_barrier")
        if isA:
            extra()
            A(f"""
            s_lshl_b32 s72, s6, 2
            s_add_u32 s72, s72, s5
            s_lshl_b32 s72, s72, 12
            s_add_u32 s72, s72, {WS_KV + 32*262144}
            v_and_b32 v17, 1, v3
            v_lshl_add_u32 v17, v17, 5, v16
            v_lshlrev_b32 v17, 4, v17
            v_lshrrev_b32 v18, 1, v3
            v_lshl_add_u32 v17, v18, 3, v17
            s_and_b32 s73, s9, 1
            s_lshl_b32 s74, s73, 8
            s_lshl_b32 s75, s73, 10
            s_add_u32 s75, s75, 2048
            s_cmp_ge_u32 s9, 2
            s_cselect_b32 s74, s75, s74
            s_mov_b32 s75, 1024
            s_cselect_b32 s75, 256, s75
            s_add_u32 s72, s72, s74
            s_add_u32 s73, s72, s75
            s_nop 4
            v_cvt_pk_bf16_f32 v40, v40, v41
            v_cvt_pk_bf16_f32 v41, v42, v43
            v_cvt_pk_bf16_f32 v44, v44, v45
            v_cvt_pk_bf16_f32 v45, v46, v47
            buffer_store_dwordx2 v[40:41], v17, s[48:51], s72 offen
            buffer_store_dwordx2 v[44:45], v17, s[48:51], s73 offen
            """)
        A("s_endpgm")
    A("K1_END:")
    A("s_endpgm")
    return A.text(), kernel_desc(name, 256), STG * NS
```

```python
from asm import *

def gen_k2(NQ=2, name="attn_kernel"):
    NW = 16 // NQ
    ND = 16 // NW
    A = Asm()
    kernel_head(A, name)
    Q = 16
    K = Q + 8*NQ
    V = K + 8
    SEL = V + 8
    P = SEL + 4
    S = P + 16
    NM = S + 32
    top = NM + 16*NQ
    if top + 20*NQ <= 256:
        O = top; L = O + 16*NQ; top = L + 4*NQ; ap = "v"; nv = top; accum = None
    else:
        O = 0; L = 16*NQ; ap = "a"; accum = (top+3)//4*4; nv = accum + 20*NQ
    def ar(a, n): return f"{ap}[{a}:{a+n-1}]"
    A(f"""
    s_cmp_ge_u32 s2, 256
    s_cbranch_scc1 K2_END
    s_load_dwordx2 s[32:33], s[0:1], 80
    v_lshrrev_b32 v1, 6, v0
    v_and_b32 v0, 63, v0
    s_and_b32 s3, s2, 7
    v_readfirstlane_b32 s8, v1
    s_lshr_b32 s4, s2, 3
    s_and_b32 s5, s4, 15
    s_lshr_b32 s5, s5, 2
    s_lshl_b32 s3, s3, 2
    s_add_u32 s5, s5, s3
    s_and_b32 s6, s4, 3
    s_cmp_ge_u32 s4, 16
    s_cselect_b32 s7, 0, 32
    s_cselect_b32 s9, 32, s5
    s_cselect_b32 s11, 0, 64
    s_add_u32 s7, s7, s5
    s_lshl_b32 s12, s6, 4
    s_mul_i32 s13, s8, {NQ}
    s_add_u32 s12, s12, s13
    s_lshl_b32 s14, s7, 6
    s_add_u32 s14, s14, s12
    s_lshl_b32 s14, s14, 11
    s_add_u32 s15, s11, s12
    s_lshl_b32 s15, s15, 6
    s_lshl_b32 s13, s5, 1
    s_add_u32 s15, s15, s13
    s_lshl_b32 s15, s15, 10
    s_add_u32 s15, s15, {WS_O}
    s_lshl_b32 s9, s9, 18
    s_add_u32 s9, s9, {WS_KV}
    v_lshlrev_b32 v1, 4, v0
    s_mul_i32 s16, s8, {ND*1024}
    v_add_u32 v4, s16, v1
    s_waitcnt lgkmcnt(0)
    """)
    srd(A, 36, "s32", "s33", WS_SIZE)
    A(f"""
    s_add_u32 s40, s32, s9
    s_addc_u32 s41, s33, 0
    s_and_b32 s41, s41, 0xffff
    s_mov_b32 s42, 0x40000
    s_mov_b32 s43, 0x20000
    """)
    for q in range(NQ):
        A(f"s_add_u32 s17, s14, {q*2048}")
        A(f"buffer_load_dwordx4 {vr(Q+8*q,4)}, v1, s[36:39], s17 offen")
        A(f"buffer_load_dwordx4 {vr(Q+8*q+4,4)}, v1, s[36:39], s17 offen offset:1024")
    def dma(m0src, soff):
        A(f"s_mov_b32 m0, {m0src}")
        A("s_nop 0")
        for i in range(ND):
            A(f"buffer_load_dwordx4 v4, s[40:43], {soff} offen offset:{i*1024} lds")
    for c in range(3):
        A(f"s_add_u32 s18, s16, {c*16384}")
        A(f"s_mov_b32 s19, {c*16384}")
        dma("s18", "s19")
    A(f"""
    s_mov_b32 s20, {3*16384}
    s_mov_b32 s22, {2*16384}
    v_mov_b32 v2, v1
    v_add_u32 v3, 16384, v1
    """)
    A(f"""
    v_lshrrev_b32 v5, 4, v0
    v_lshrrev_b32 v6, 2, v0
    v_xor_b32 v5, v5, v6
    v_and_b32 v5, 1, v5
    v_and_b32 v6, 3, v0
    v_or_b32 v5, v5, v6
    v_cmp_eq_u32 vcc, 0, v5
    v_mov_b32 v6, 0x3f803f80
    s_nop 1
    v_cndmask_b32 v{SEL}, 0, v6, vcc
    v_mov_b32 v{SEL+1}, v{SEL}
    v_mov_b32 v{SEL+2}, v{SEL}
    v_mov_b32 v{SEL+3}, v{SEL}
    """)
    def zero_acc():
        for i in range(20*NQ):
            if ap == "v": A(f"v_mov_b32 v{O+i}, 0")
            else: A(f"v_accvgpr_write_b32 a{i}, 0")
    zero_acc()
    for i in range(8): A(f"v_mov_b32 v{V+i}, 0")
    for i in range(16): A(f"v_mov_b32 v{P+i}, 0")
    A(f"s_waitcnt vmcnt({2*ND})")
    A("s_barrier")
    A(f"ds_read_b128 {vr(K,4)}, v2")
    A(f"ds_read_b128 {vr(K+4,4)}, v2 offset:1024")
    A("s_waitcnt lgkmcnt(0)")
    def qk(sb, q, c0):
        return [f"v_mfma_f32_32x32x16_bf16 {vr(S+16*sb,16)}, {vr(K,4)}, {vr(Q+8*q,4)}, {c0}",
                f"v_mfma_f32_32x32x16_bf16 {vr(S+16*sb,16)}, {vr(K+4,4)}, {vr(Q+8*q+4,4)}, {vr(S+16*sb,16)}"]
    def maxtree(sb, dst, first=True):
        s = S + 16*sb
        if first:
            A(f"v_max3_f32 v{dst}, v{s}, v{s+1}, v{s+2}")
            for i in range(3, 15, 2): A(f"v_max3_f32 v{dst}, v{dst}, v{s+i}, v{s+i+1}")
            A(f"v_max_f32 v{dst}, v{dst}, v{s+15}")
        else:
            for i in range(0, 16, 2): A(f"v_max3_f32 v{dst}, v{dst}, v{s+i}, v{s+i+1}")
    def set_negm(q, src):
        A(f"v_mov_b32 v7, v{src}")
        A("s_nop 1")
        A(f"v_permlane32_swap_b32 v{src}, v7")
        A("s_nop 1")
        A(f"v_max_f32 v7, v{src}, v7")
        for i in range(16): A(f"v_sub_f32 v{NM+16*q+i}, 0, v7")
    for q0 in range(0, NQ, 2):
        for l in qk(0, q0, "0") + qk(1, q0+1, "0"): A(l)
        A("s_nop 15")
        for q in (q0, q0+1):
            maxtree(q - q0, 6)
            set_negm(q, 6)
    A("s_nop 1")
    for l in qk(0, 0, vr(NM,16)): A(l)
    A("s_mov_b32 s10, 16")
    A("s_nop 15")

    def pv(pb, q):
        return [f"v_mfma_f32_32x32x16_bf16 {ar(O+16*q,16)}, {vr(V,4)}, {vr(P+8*pb,4)}, {ar(O+16*q,16)}",
                f"v_mfma_f32_32x32x16_bf16 {ar(O+16*q,16)}, {vr(V+4,4)}, {vr(P+8*pb+4,4)}, {ar(O+16*q,16)}",
                f"v_mfma_f32_16x16x32_bf16 {ar(L+4*q,4)}, {vr(SEL,4)}, {vr(P+8*pb,4)}, {ar(L+4*q,4)}",
                f"v_mfma_f32_16x16x32_bf16 {ar(L+4*q,4)}, {vr(SEL,4)}, {vr(P+8*pb+4,4)}, {ar(L+4*q,4)}"]
    def valu(sb):
        s = S + 16*sb; p = P + 8*sb
        e = lambda i: f"v_exp_f32 v{s+i}, v{s+i}"
        c = lambda i: f"v_cvt_pk_bf16_f32 v{p+i}, v{s+2*i}, v{s+2*i+1}"
        return [[e(0),e(1),e(2)], [e(3),c(0),e(4),e(5)], [c(1),e(6),e(7),e(8)], [c(2),e(9),c(3),e(10)],
                [e(11),c(4),e(12)], [e(13),c(5),e(14),e(15),c(6),c(7)]]
    def phase(t, q):
        cur = q % 2; nxt = 1 - cur
        qn = (q + 1) % NQ; qp = (q - 1) % NQ
        m = qk(nxt, qn, vr(NM+16*qn,16)) + pv(nxt, qp)
        va = valu(cur)
        pre = [[] for _ in range(6)]; post = [[] for _ in range(6)]
        if q == NQ-1: pre[0].append("s_waitcnt lgkmcnt(2)" if NQ == 2 else "s_waitcnt lgkmcnt(0)")
        if q == 1: pre[2].append("s_waitcnt lgkmcnt(0)")
        if q == NQ-2:
            if t == 3: a, o = "v3", 0
            else: a, o = "v2", (t+1)*4096
            post[1] += [f"ds_read_b128 {vr(K,4)}, {a} offset:{o}", f"ds_read_b128 {vr(K+4,4)}, {a} offset:{o+1024}"]
        if q == 0:
            post[3] += [f"ds_read_b128 {vr(V,4)}, v2 offset:{t*4096+2048}", f"ds_read_b128 {vr(V+4,4)}, v2 offset:{t*4096+3072}"]
        for i in range(6):
            for l in pre[i]: A(l)
            A(m[i])
            for l in post[i]: A(l)
            for l in va[i]: A(l)
    A(".p2align 6")
    A("K2_LOOP:")
    for t in range(4):
        for q in range(NQ):
            if t == 3 and q == 0:
                A("s_waitcnt vmcnt(0)")
                A("s_barrier")
                A("s_and_b32 s21, s20, 0xffff")
                A("s_add_u32 s21, s21, s16")
                dma("s21", "s20")
                A("s_add_u32 s20, s20, 16384")
            phase(t, q)
    A(f"""
    v_mov_b32 v2, v3
    v_add_u32 v3, s22, v1
    s_add_u32 s22, s22, 16384
    s_and_b32 s22, s22, 0xffff
    s_sub_u32 s10, s10, 1
    s_cmp_lg_u32 s10, 0
    s_cbranch_scc1 K2_LOOP
    """)
    for l in pv((NQ-1) % 2, NQ-1): A(l)
    A("s_mov_b32 s24, 0")
    A("K2_FIN:")
    A("s_nop 15")
    A("s_mov_b32 s26, 0x5f800000")
    A("s_mov_b64 s[28:29], 0")
    T = S
    for q in range(NQ):
        if ap == "a":
            A(f"v_accvgpr_read_b32 v5, a{L+4*q}")
            for i in range(16): A(f"v_accvgpr_read_b32 v{T+i}, a{O+16*q+i}")
            o = T; lreg = 5
        else:
            o = O + 16*q; lreg = L + 4*q
        A(f"v_cmp_nlt_f32 vcc, v{lreg}, s26" if False else f"v_cmp_ngt_f32 vcc, s26, v{lreg}")
        A(f"v_rcp_f32 v6, v{lreg}")
        A("s_or_b64 s[28:29], s[28:29], vcc")
        A("v_mov_b32 v7, 0")
        for i in range(16): A(f"v_mul_f32 v{T+16+i}, v{o+i}, v6")
        for i in range(16): A(f"v_fmac_f32 v7, 0, v{T+16+i}")
        A("v_cmp_u_f32 vcc, v7, v7")
        d = NM + 16*q if False else None
        for i in range(8): A(f"v_cvt_pk_bf16_f32 v{Q+8*q+i if False else P+i}, v{T+16+2*i}, v{T+16+2*i+1}")
        A("s_or_b64 s[28:29], s[28:29], vcc")
        A(f"s_add_u32 s17, s15, {q*65536}")
        A(f"buffer_store_dwordx4 {vr(P,4)}, v1, s[36:39], s17 offen")
        A(f"buffer_store_dwordx4 {vr(P+4,4)}, v1, s[36:39], s17 offen offset:1024")
        A("s_nop 1")
    A("""
    s_cmp_lg_u32 s24, 0
    s_cbranch_scc1 K2_END
    s_cmp_eq_u64 s[28:29], 0
    s_cbranch_scc1 K2_END
    """)
    MX = 8
    for q in range(NQ): A(f"v_mov_b32 v{MX+q}, 0xff800000")
    A("s_mov_b32 s20, 0")
    A("K2_SL1:")
    A(f"buffer_load_dwordx4 {vr(K,4)}, v1, s[40:43], s20 offen")
    A(f"buffer_load_dwordx4 {vr(K+4,4)}, v1, s[40:43], s20 offen offset:1024")
    A("s_waitcnt vmcnt(0)")
    for q in range(NQ):
        for l in qk(0, q, "0"): A(l)
        A("s_nop 15")
        maxtree(0, MX+q, first=False)
    A("""
    s_add_u32 s20, s20, 4096
    s_cmp_lt_u32 s20, 0x40000
    s_cbranch_scc1 K2_SL1
    """)
    for q in range(NQ): set_negm(q, MX+q)
    zero_acc()
    A("s_mov_b32 s20, 0")
    A("K2_SL2:")
    A(f"buffer_load_dwordx4 {vr(K,4)}, v1, s[40:43], s20 offen")
    A(f"buffer_load_dwordx4 {vr(K+4,4)}, v1, s[40:43], s20 offen offset:1024")
    A(f"buffer_load_dwordx4 {vr(V,4)}, v1, s[40:43], s20 offen offset:2048")
    A(f"buffer_load_dwordx4 {vr(V+4,4)}, v1, s[40:43], s20 offen offset:3072")
    A("s_waitcnt vmcnt(0)")
    for q in range(NQ):
        for l in qk(0, q, vr(NM+16*q,16)): A(l)
        A("s_nop 15")
        for grp in valu(0):
            for l in grp: A(l)
        A("s_nop 1")
        for l in pv(0, q): A(l)
        A("s_nop 7")
    A("""
    s_add_u32 s20, s20, 4096
    s_cmp_lt_u32 s20, 0x40000
    s_cbranch_scc1 K2_SL2
    s_mov_b32 s24, 1
    s_branch K2_FIN
    """)
    A("K2_END:")
    A("s_endpgm")
    return A.text(), kernel_desc(name, nv, accum=accum), 65536, NW*64
```

```python
from asm import *

def gen_k3(NS=4, name="oproj_kernel"):
    A = Asm()
    STG = 32768
    NST = 16
    kernel_head(A, name)
    A(f"""
    s_cmp_ge_u32 s2, 256
    s_cbranch_scc1 K3_END
    s_load_dwordx2 s[16:17], s[0:1], 32
    s_load_dwordx4 s[20:23], s[0:1], 56
    s_load_dwordx2 s[32:33], s[0:1], 80
    v_lshrrev_b32 v1, 6, v0
    v_and_b32 v0, 63, v0
    s_and_b32 s3, s2, 7
    v_readfirstlane_b32 s8, v1
    s_lshr_b32 s4, s2, 3
    s_lshr_b32 s7, s3, 2
    s_and_b32 s6, s3, 1
    s_lshl_b32 s6, s6, 3
    s_lshr_b32 s9, s4, 2
    s_add_u32 s6, s6, s9
    s_and_b32 s5, s3, 2
    s_lshl_b32 s5, s5, 1
    s_and_b32 s9, s4, 3
    s_add_u32 s5, s5, s9
    s_waitcnt lgkmcnt(0)
    s_cmp_eq_u32 s7, 0
    s_cselect_b32 s40, s16, s20
    s_cselect_b32 s41, s17, s21
    s_and_b32 s41, s41, 0xffff
    s_mov_b32 s42, 0x200000
    s_mov_b32 s43, 0x20000
    """)
    srd(A, 36, "s32", "s33", WS_SIZE)
    srd(A, 48, "s22", "s23", 0x800000)
    A("""
    s_cmp_ge_u32 s8, 4
    s_cbranch_scc1 K3_LOADER
    """)
    ACC = 64
    F = [dict(x=32, w=40), dict(x=48, w=56)]
    nsets = (NS + 1) // 2
    A(f"""
    s_and_b32 s9, s8, 1
    s_lshl_b32 s9, s9, 13
    v_lshlrev_b32 v2, 4, v0
    v_add_u32 v8, s9, v2
    v_lshrrev_b32 v3, 5, v0
    v_lshrrev_b32 v2, 2, v0
    v_and_b32 v2, 3, v2
    s_and_b32 s9, s8, 2
    v_xor_b32 v4, s9, v2
    v_lshlrev_b32 v4, 6, v4
    v_lshl_add_u32 v5, v3, 2, v2
    v_lshl_add_u32 v4, v5, 8, v4
    v_lshrrev_b32 v5, 4, v0
    v_and_b32 v5, 1, v5
    v_lshl_add_u32 v4, v5, 5, v4
    v_and_b32 v5, 3, v0
    v_lshl_add_u32 v4, v5, 3, v4
    v_add_u32 v9, 16384, v4
    v_xor_b32 v10, 64, v9
    """)
    for k in range(1, nsets):
        for j in range(3):
            A(f"v_add_u32 v{8+4*k+j}, {2*STG*k}, v{8+j}")
    for i in range(64): A(f"v_mov_b32 v{ACC+i}, 0")
    for i in range(16): A(f"v_mov_b32 v{48+i}, 0")
    def reads(slot, ks, f):
        k = slot // 2; off = (slot % 2) * STG
        b = 8 + 4 * k
        fx, fw = F[f]['x'], F[f]['w']
        def xr(tt): return f"ds_read_b128 {vr(fx+4*tt,4)}, v{b} offset:{off+tt*4096+ks*1024}"
        def wr(c, j): return f"ds_read_b64_tr_b16 {vr(fw+4*c+2*j,2)}, v{b+1+c} offset:{off+(16*ks+8*j)*256}"
        return [wr(0,0), wr(0,1), xr(0), wr(1,0), wr(1,1), xr(1)]
    def mfmas(f):
        fx, fw = F[f]['x'], F[f]['w']
        out = []
        for tt in range(2):
            for c in range(2):
                a = ACC + 16 * (tt * 2 + c)
                out.append(f"v_mfma_f32_32x32x16_bf16 {vr(a,16)}, {vr(fw+4*c,4)}, {vr(fx+4*tt,4)}, {vr(a,16)}")
        return out
    def stage(slot):
        A("s_barrier")
        for ks in range(4):
            for l in interleave(mfmas((ks+1) % 2), reads(slot, ks, ks % 2), [3,3]): A(l)
            A("s_waitcnt lgkmcnt(0)")
    q, r = divmod(NST, NS)
    A(f"s_mov_b32 s10, {q}")
    A(".p2align 6")
    A("K3_CL:")
    for s in range(NS): stage(s)
    A(f"""
    s_sub_u32 s10, s10, 1
    s_cmp_lg_u32 s10, 0
    s_cbranch_scc1 K3_CL
    """)
    for s in range(r): stage(s)
    for l in mfmas(1): A(l)
    A(f"""
    s_lshl_b32 s11, s6, 7
    s_and_b32 s9, s8, 1
    s_lshl_b32 s9, s9, 6
    s_add_u32 s11, s11, s9
    s_lshl_b32 s11, s11, 12
    s_lshl_b32 s12, s7, 11
    s_add_u32 s11, s11, s12
    s_lshl_b32 s12, s5, 8
    s_add_u32 s11, s11, s12
    s_and_b32 s9, s8, 2
    s_lshl_b32 s9, s9, 6
    s_add_u32 s11, s11, s9
    s_add_u32 s12, s11, {32*4096}
    v_and_b32 v2, 31, v0
    v_lshlrev_b32 v2, 12, v2
    v_lshl_add_u32 v2, v3, 4, v2
    s_nop 7
    """)
    for tt in range(2):
        for c in range(2):
            a = ACC + 16 * (tt * 2 + c)
            for i in range(8): A(f"v_cvt_pk_bf16_f32 v{a+i}, v{a+2*i}, v{a+2*i+1}")
            A("s_nop 1")
            A(f"v_permlane32_swap_b32 v{a}, v{a+2}")
            A(f"v_permlane32_swap_b32 v{a+1}, v{a+3}")
            A(f"v_permlane32_swap_b32 v{a+4}, v{a+6}")
            A(f"v_permlane32_swap_b32 v{a+5}, v{a+7}")
            so = "s11" if tt == 0 else "s12"
            A(f"buffer_store_dwordx4 {vr(a,4)}, v2, s[48:51], {so} offen offset:{c*64}")
            A(f"buffer_store_dwordx4 {vr(a+4,4)}, v2, s[48:51], {so} offen offset:{c*64+32}")
    A("s_endpgm")
    A("K3_LOADER:")
    A(f"""
    s_sub_u32 s9, s8, 4
    v_lshlrev_b32 v10, 4, v0
    v_lshrrev_b32 v3, 4, v0
    v_lshrrev_b32 v2, 2, v0
    v_and_b32 v2, 3, v2
    v_xor_b32 v2, v2, v3
    v_lshlrev_b32 v2, 6, v2
    v_and_b32 v4, 3, v0
    v_lshl_add_u32 v2, v4, 4, v2
    v_lshl_add_u32 v11, v3, 11, v2
    s_lshl_b32 s60, s7, 6
    s_lshl_b32 s61, s6, 2
    s_add_u32 s60, s60, s61
    s_add_u32 s60, s60, s9
    s_lshl_b32 s60, s60, 16
    s_add_u32 s60, s60, {WS_O}
    s_lshl_b32 s61, s9, 15
    s_lshl_b32 s62, s5, 8
    s_add_u32 s61, s61, s62
    s_lshl_b32 s65, s9, 12
    s_add_u32 s66, s65, 16384
    s_mov_b32 s68, 0
    """)
    def issue():
        A(f"""
        s_add_u32 m0, s65, s68
        s_add_u32 s70, s61, 8192
        buffer_load_dwordx4 v10, s[36:39], s60 offen lds
        buffer_load_dwordx4 v10, s[36:39], s60 offen offset:1024 lds
        buffer_load_dwordx4 v10, s[36:39], s60 offen offset:2048 lds
        buffer_load_dwordx4 v10, s[36:39], s60 offen offset:3072 lds
        s_add_u32 m0, s66, s68
        s_add_u32 s60, s60, 4096
        buffer_load_dwordx4 v11, s[40:43], s61 offen lds
        s_add_u32 m0, m0, 1024
        s_add_u32 s71, s61, 16384
        buffer_load_dwordx4 v11, s[40:43], s70 offen lds
        s_add_u32 m0, m0, 1024
        s_add_u32 s70, s61, 24576
        buffer_load_dwordx4 v11, s[40:43], s71 offen lds
        s_add_u32 m0, m0, 1024
        s_add_u32 s61, s61, {64*2048}
        buffer_load_dwordx4 v11, s[40:43], s70 offen lds
        s_add_u32 s68, s68, {STG}
        s_cmp_eq_u32 s68, {STG*NS}
        s_cselect_b32 s68, 0, s68
        """)
    n = 8
    for s in range(NS): issue()
    A(f"s_waitcnt vmcnt({(NS-1)*n})")
    A("s_barrier")
    A(f"s_mov_b32 s10, {NST-NS}")
    A("K3_LL:")
    A(f"s_waitcnt vmcnt({(NS-2)*n})")
    A("s_barrier")
    issue()
    A(f"""
    s_sub_u32 s10, s10, 1
    s_cmp_lg_u32 s10, 0
    s_cbranch_scc1 K3_LL
    """)
    for s in range(NST-NS, NST-1):
        A(f"s_waitcnt vmcnt({(NST-2-s)*n})")
        A("s_barrier")
    A("K3_END:")
    A("s_endpgm")
    return A.text(), kernel_desc(name, 128), STG * NS
```

```python
import sys, importlib
from asm import *
import k1, k2, k3
HDR = open("concat_heads__grouped_kv_mqa__softmax_full_mha__prompt.s.ref").read().split("; Override launch")[0]
def build(out, k1a={}, k2a={}, k3a={}):
    t1, d1, l1 = k1.gen_k1(**k1a)
    t2, d2, l2, b2 = k2.gen_k2(**k2a)
    t3, d3, l3 = k3.gen_k3(**k3a)
    s = HDR
    s += f"; @launch kernel=qkv_kernel grid=(256,1,1) block=(512,1,1) lds={l1}\n"
    s += f"; @launch kernel=attn_kernel grid=(256,1,1) block=({b2},1,1) lds={l2}\n"
    s += f"; @launch kernel=oproj_kernel grid=(256,1,1) block=(512,1,1) lds={l3}\n"
    s += '.amdgcn_target "amdgcn-amd-amdhsa--gfx950"\n'
    s += t1 + t2 + t3 + d1 + d2 + d3
    open(out, "w").write(s)
if __name__ == "__main__":
    build("concat_heads__grouped_kv_mqa__softmax_full_mha__prompt.s")
```
